```python
import torch

def _softmax(x, axis=-1):
    return torch.softmax(x, dim=axis)
def _gelu(x):
    return torch.nn.functional.gelu(x, approximate="tanh")
def _silu(x):
    return torch.nn.functional.silu(x)
def _sigmoid(x):
    return torch.sigmoid(x)
def _layernorm(x, axis=-1, eps=1e-5):
    m = x.mean(dim=axis, keepdim=True)
    v = x.var(dim=axis, keepdim=True, unbiased=False)
    return (x - m) / torch.sqrt(v + eps)
def _scatter_add(tgt, idx, src, axis=0):
    return tgt.clone().index_add_(axis, idx, src)
def _segment_sum(src, seg, n):
    out = torch.zeros((n,) + src.shape[1:], dtype=src.dtype)
    return out.index_add_(0, seg, src)
def _pad(x, pw):
    flat = tuple(v for pair in reversed(pw) for v in pair)
    return torch.nn.functional.pad(x, flat)

kernel_name = 'standalone__mixer_s_mlp__prompt'

def setup_inputs():

    _w = (lambda a: (lambda t: t.to(torch.bfloat16) if t.is_floating_point() else t)(torch.as_tensor(a)))
    B, S, D, F = 1, 2048, 448, 1792
    return {
        "x":  _w((lambda *s: torch.randn(*s, dtype=torch.bfloat16) * 0.4)(B, S, D)),
        "w1": _w((lambda *s: torch.randn(*s, dtype=torch.bfloat16) * 3.2)(D, D) * (D ** -0.5)),
        "w2": _w((lambda *s: torch.randn(*s, dtype=torch.bfloat16) * 3.2)(D, D) * (D ** -0.5)),
        "w3": _w((lambda *s: torch.randn(*s, dtype=torch.bfloat16) * 3.2)(D, F) * (D ** -0.5)),
        "w4": _w((lambda *s: torch.randn(*s, dtype=torch.bfloat16) * 0.8)(F, D) * (F ** -0.5)),
    }

def reference(x, w1, w2, w3, w4):
    B, S, D = x.shape
    h = _gelu(_layernorm(x, axis=-1) @ w1)
    c = D // 4
    g0 = _pad(h[:, :, 0*c:1*c], ((0, 0), (1, 0), (0, 0)))[:, :S, :]
    g1 = _pad(h[:, :, 1*c:2*c], ((0, 0), (0, 1), (0, 0)))[:, 1:, :]
    g2 = _pad(h[:, :, 2*c:3*c], ((0, 0), (2, 0), (0, 0)))[:, :S, :]
    g3 = _pad(h[:, :, 3*c:   ], ((0, 0), (0, 2), (0, 0)))[:, 2:, :]
    hs = torch.concatenate([g0, g1, g2, g3], axis=-1) @ w2
    x1 = x + hs
    h2 = _gelu(_layernorm(x1, axis=-1) @ w3) @ w4
    return x1 + h2
```

```python
import re

TRANS = ("v_exp_f32", "v_log_f32", "v_rcp_f32", "v_rsq_f32", "v_sqrt_f32", "v_sin_f32", "v_cos_f32")
_REG = re.compile(r"^(-|\|)?([vas])(?:\[(\d+):(\d+)\]|(\d+))\|?$")


def regs_of(op):
    op = op.strip()
    m = _REG.match(op)
    if m:
        k = m.group(2)
        if m.group(3) is not None:
            return [f"{k}{i}" for i in range(int(m.group(3)), int(m.group(4)) + 1)]
        return [f"{k}{m.group(5)}"]
    if op in ("vcc", "vcc_lo", "vcc_hi"):
        return ["vcc"]
    if op in ("exec", "exec_lo", "exec_hi"):
        return ["exec"]
    if op == "m0":
        return ["m0"]
    return []


class I:
    def __init__(self, text, tag=None, lds=None, pseudo=None, arg=None):
        self.text = text
        self.tag = tag
        self.lds = lds
        self.pseudo = pseudo
        self.arg = arg
        self.wr = set()
        self.rd = set()
        self.kind = "other"
        self.A = self.B = self.C = set()
        self.wide_store = False
        if pseudo is None:
            self._parse()

    def _parse(self):
        t = self.text.split(";")[0].strip()
        if t.endswith(":") or t.startswith("."):
            self.kind = "label"
            return
        mn, _, rest = t.partition(" ")
        self.mn = mn
        ops = [o.strip() for o in rest.split(",")] if rest else []
        clean = []
        for o in ops:
            clean.append(o.split(" ")[0])
        R = [regs_of(o) for o in clean]
        allr = lambda L: set(sum(L, []))
        if mn.startswith("v_mfma"):
            self.kind = "mfma"
            self.passes = 8 if "32x32x16" in mn else 4
            self.wr = set(R[0]); self.A = set(R[1]); self.B = set(R[2]); self.C = set(R[3])
            self.rd = self.A | self.B | self.C
        elif mn.startswith("v_"):
            self.kind = "valu"
            self.wr = set(R[0]); self.rd = allr(R[1:])
            base = mn.replace("_e32", "").replace("_e64", "").replace("_dpp", "")
            self.base = base
            if base in TRANS:
                self.kind = "trans"
            if base.startswith("v_dot2"):
                self.kind = "dot"
            if base.startswith("v_permlane"):
                self.kind = "perm"
                self.wr = allr(R); self.rd = allr(R)
            if base in ("v_fmac_f32", "v_dot2c_f32_bf16") or mn.endswith("_dpp"):
                self.rd |= self.wr
            self.dpp = mn.endswith("_dpp")
            if base in ("v_add_co_u32", "v_addc_co_u32"):
                self.wr = set(R[0]) | set(R[1]); self.rd = allr(R[2:])
        elif mn.startswith("ds_read"):
            self.kind = "dsr"
            self.wr = set(R[0]); self.rd = allr(R[1:])
        elif mn.startswith("ds_write"):
            self.kind = "dsw"
            self.rd = allr(R)
        elif mn.startswith("buffer_load") or mn.startswith("global_load"):
            if re.search(r"\blds\b", t):
                self.kind = "dma"
                self.rd = allr(R) | {"m0"}
            else:
                self.kind = "vld"
                self.wr = set(R[0]); self.rd = allr(R[1:])
        elif mn.startswith("buffer_store") or mn.startswith("buffer_atomic"):
            self.kind = "vst"
            self.rd = allr(R)
            self.data = set(R[0])
            self.wide_store = mn.endswith("x4") or mn.endswith("x3")
        elif mn == "s_barrier":
            self.kind = "barrier"
        elif mn == "s_nop":
            self.kind = "nop"
            self.n = int(clean[0]) + 1
        elif mn == "s_waitcnt":
            self.kind = "wait"
            m = re.search(r"vmcnt\((\d+)\)", t); self.vm = int(m.group(1)) if m else None
            m = re.search(r"lgkmcnt\((\d+)\)", t); self.lg = int(m.group(1)) if m else None
        elif mn.startswith("s_cbranch") or mn in ("s_branch", "s_endpgm", "s_setprio", "s_sleep"):
            self.kind = "ctl"
        elif mn.startswith("s_load") or mn.startswith("s_memtime") or mn.startswith("s_memrealtime"):
            self.kind = "smem"
            self.wr = set(R[0]); self.rd = allr(R[1:])
        elif mn.startswith("s_cmp") or mn.startswith("s_bitcmp"):
            self.kind = "salu"
            self.rd = allr(R)
        elif mn.startswith("s_"):
            self.kind = "salu"
            self.wr = set(R[0]); self.rd = allr(R[1:])
            if mn in ("s_addk_i32", "s_mulk_i32"):
                self.rd |= self.wr
        else:
            raise ValueError("unknown instruction: " + t)

    def is_valu(self):
        return self.kind in ("valu", "trans", "dot", "perm")


def waitvm(tag):
    return I("", pseudo="waitvm", arg=tag)


def waitlg(tag=None):
    return I("", pseudo="waitlg", arg=tag)


def waitregs(*ops):
    i = I("", pseudo="waitregs")
    for o in ops:
        i.rd |= set(regs_of(o))
    return i


def need_states(p, c):
    n = 0
    vg = lambda s: {r for r in s if r[0] in "va" and r != "vcc"}
    sg = lambda s: {r for r in s if r[0] == "s" or r == "vcc"}
    if p.is_valu():
        pw = vg(p.wr)
        if c.kind == "mfma" and pw & c.rd:
            n = max(n, 3 if p.kind == "dot" else 2)
        if c.is_valu():
            if (getattr(c, "dpp", False) or c.kind == "perm") and pw & c.rd:
                n = max(n, 2)
            if c.base in ("v_readfirstlane_b32", "v_readlane_b32") and pw & c.rd:
                n = max(n, 1)
            if p.kind == "trans" and c.kind != "trans" and pw & c.rd:
                n = max(n, 1)
            if sg(p.wr) & c.rd:
                n = max(n, 2)
        if p.kind == "dot" and pw & (c.rd | c.wr):
            same_acc = c.kind == "dot" and c.base == p.base and pw == vg(c.wr) and c.text.count(next(iter(pw)) + ",") == 1 and not c.text.rstrip().endswith(" " + next(iter(pw)))
            if not same_acc:
                n = max(n, 3)
        if c.kind in ("vld", "vst", "dma") and sg(p.wr) & c.rd:
            n = max(n, 5)
        if c.kind == "salu" and sg(p.wr) & c.rd:
            n = max(n, 1)
    if p.kind == "mfma":
        far = 12 if p.passes == 8 else 8
        ovl = 10 if p.passes == 8 else 6
        war = 7 if p.passes == 8 else 3
        if c.kind == "mfma":
            if p.wr & (c.A | c.B):
                n = max(n, far)
            if p.wr & c.C and not (p.wr == c.C and p.passes == c.passes):
                n = max(n, ovl)
            if p.wr & c.wr and not (p.wr == c.C and p.passes == c.passes):
                n = max(n, far)
        else:
            if p.wr & (c.rd | c.wr):
                n = max(n, far)
            if p.C & c.wr:
                n = max(n, war)
    if p.kind == "salu" and "m0" in p.wr and c.kind == "dma":
        n = max(n, 1)
    if p.kind == "vst" and p.wide_store and p.data & c.wr:
        n = max(n, 2)
    return n


def finalize(prog, check_lds=True, verbose=False):
    out = []
    vm = []
    lg = []
    done_vm = {}
    done_lg = {}
    tags = {}

    def emit_wait(nvm, nlg):
        parts = []
        if nvm is not None:
            nvm = min(nvm, 63)
            parts.append(f"vmcnt({nvm})")
        if nlg is not None:
            nlg = min(nlg, 15)
            parts.append(f"lgkmcnt({nlg})")
        if out and out[-1].kind == "wait" and getattr(out[-1], "auto", False):
            prev = out.pop()
            if prev.vm is not None:
                nvm = prev.vm if nvm is None else min(nvm, prev.vm)
            if prev.lg is not None:
                nlg = prev.lg if nlg is None else min(nlg, prev.lg)
            parts = ([f"vmcnt({nvm})"] if nvm is not None else []) + ([f"lgkmcnt({nlg})"] if nlg is not None else [])
        w = I("s_waitcnt " + " ".join(parts))
        w.auto = True
        out.append(w)
        retire(nvm, nlg)

    def retire(nvm, nlg):
        if nvm is not None:
            while len(vm) > nvm:
                done_vm[id(vm.pop(0))] = len(out)
        if nlg is not None:
            while len(lg) > nlg:
                done_lg[id(lg.pop(0))] = len(out)

    for ins in prog:
        if ins.pseudo == "waitvm":
            op = tags[ins.arg]
            if op in vm:
                emit_wait(len(vm) - 1 - vm.index(op), None)
            continue
        if ins.pseudo == "waitlg":
            if ins.arg is None:
                if lg:
                    emit_wait(None, 0)
            else:
                op = tags[ins.arg]
                if op in lg:
                    emit_wait(None, len(lg) - 1 - lg.index(op))
            continue
        touch = ins.rd | ins.wr
        nvm = nlg = None
        for k, op in enumerate(vm):
            if op.wr & touch:
                nvm = len(vm) - 1 - k
        for k, op in enumerate(lg):
            if op.wr & touch:
                nlg = len(lg) - 1 - k
        if nvm is not None or nlg is not None:
            emit_wait(nvm, nlg)
        if ins.pseudo == "waitregs":
            continue
        if ins.kind == "wait":
            out.append(ins)
            retire(ins.vm, ins.lg)
            continue
        if ins.kind not in ("label", "nop", "barrier"):
            dist = 0
            need = 0
            for p in reversed(out):
                if p.kind == "label":
                    continue
                if dist >= 20:
                    break
                need = max(need, need_states(p, ins) - dist)
                dist += p.n if p.kind == "nop" else 1
            if need > 0:
                nop = I(f"s_nop {need - 1}")
                nop.auto = True
                out.append(nop)
        out.append(ins)
        ins.pos = len(out) - 1
        if ins.tag:
            assert ins.tag not in tags, ins.tag
            tags[ins.tag] = ins
        if ins.kind in ("vld", "vst", "dma"):
            vm.append(ins)
            assert len(vm) <= 63, "too many vmem ops outstanding at " + ins.text
        if ins.kind in ("dsr", "dsw"):
            lg.append(ins)
    if check_lds:
        lds_check(out, done_vm, done_lg)
    return out


def lds_check(out, done_vm, done_lg):
    bars = [i for i, x in enumerate(out) if x.kind == "barrier"]
    ops = [(i, x) for i, x in enumerate(out) if x.kind in ("dsr", "dsw", "dma")]
    errs = []
    for i, x in ops:
        assert x.lds is not None, "LDS op without range: " + x.text
        assert 0 <= x.lds[0] < x.lds[1] <= 163840, (x.text, x.lds)
    for bi, (j, b) in enumerate(ops):
        for i, a in ops[:bi]:
            if a.kind == "dsr" and b.kind == "dsr":
                continue
            if a.lds[1] <= b.lds[0] or b.lds[1] <= a.lds[0]:
                continue
            if a.kind != "dsr" and b.kind != "dsr" and len(a.lds) > 3 and len(b.lds) > 3 and a.lds[3] == b.lds[3]:
                continue
            done = (done_vm if a.kind == "dma" else done_lg).get(id(a))
            private = a.lds[2] is not None and a.lds[2] == b.lds[2]
            if private:
                if a.kind != "dma" and b.kind != "dma":
                    continue
                if done is None or done > j:
                    errs.append(f"private LDS hazard: [{i}] {a.text}  ->  [{j}] {b.text}")
            else:
                if done is None or not any(done <= k < j for k in bars):
                    errs.append(f"shared LDS hazard: [{i}] {a.text} {a.lds} ->  [{j}] {b.text} {b.lds}")
    if errs:
        raise RuntimeError("%d LDS hazards, first:\n" % len(errs) + "\n".join(errs[:12]))


def cost(i):
    if i.pseudo:
        return 2
    if i.kind == "trans":
        return 8
    if i.kind == "mfma":
        return 8
    if i.kind == "label":
        return 0
    return 4


def weave(primary, fillers, start=0, end=None):
    n = len(primary)
    end = n if end is None else end
    total = sum(sum(cost(x) for x in a) for a in fillers)
    out = [list(g) for g in primary]
    acc = 0.0
    k = 0
    for gi in range(start, end):
        target = total * (gi - start + 1) / (end - start)
        while k < len(fillers) and (acc + 0.5 * sum(cost(x) for x in fillers[k]) <= target or gi == end - 1):
            out[gi].extend(fillers[k])
            acc += sum(cost(x) for x in fillers[k])
            k += 1
    return out


def flat(groups):
    return [x for g in groups for x in g]


class Pool:
    def __init__(self, kind, lo, hi):
        self.kind = kind
        self.free = set(range(lo, hi))
        self.named = {}
        self.high = lo

    def alloc(self, name, n=1, align=None, at=None):
        align = align or (1 if n == 1 else 2)
        assert name not in self.named, name
        cands = [at] if at is not None else sorted(self.free)
        for b in cands:
            if b % align == 0 and all(b + i in self.free for i in range(n)):
                for i in range(n):
                    self.free.remove(b + i)
                self.named[name] = (b, n)
                self.high = max(self.high, b + n)
                return R(self.kind, b, n)
        raise RuntimeError(f"out of {self.kind} regs for {name} ({n}); live: {self.named}")

    def release(self, *names):
        for name in names:
            b, n = self.named.pop(name)
            self.free |= set(range(b, b + n))


class R:
    def __init__(self, kind, base, n):
        self.kind, self.base, self.n = kind, base, n

    def __call__(self, i=0, n=1):
        assert 0 <= i and i + n <= self.n, (i, n, self.n)
        b = self.base + i
        return f"{self.kind}{b}" if n == 1 else f"{self.kind}[{b}:{b + n - 1}]"

    def __str__(self):
        return self(0, self.n)

    def __format__(self, spec):
        return str(self)
```

```python
import struct, sys
from asmgen import *

KNAME = "standalone__mixer_s_mlp__prompt_kernel"
RB = 896
WS_FLAG, WS_H, WS_X1, WS_ST, WS_G, WS_SIZE = 0, 0x10000, 0x200000, 0x3D0000, 0x400000, 0xB00000
WS_STAMP = 0xC00000
OOB = 0x40000000
SL = 4096
XROW = 928
ST1 = 63104
ST2 = 39 * SL + 3072
RED_A, RED_B = 19 * SL, 0
RED_O, RED_W = 1088, 8704

f2u = lambda f: struct.unpack("<I", struct.pack("<f", f))[0]
C1 = 2 * 0.7978845608028654 * 1.4426950408889634
C2 = C1 * 0.044715
GA = C2 ** (1.0 / 3)
GB = C1 / GA


def gen(stamps=False, opt=None):
    o = dict(stages=(5, 10, 14), spin=400000, touch=True, xst="sc1", xld="sc1")
    o.update(opt or {})
    XST, XLD = o["xst"], o["xld"]
    V = Pool("v", 1, 256)
    S = Pool("s", 20, 100)
    P = []
    tail = []

    def E(text, **kw):
        i = I(text, **kw)
        P.append(i)
        return i

    def X(lst):
        P.extend(lst)

    nstamp = [0]
    if stamps:
        sST = S.alloc("stamp", 4, align=2)
        vST = V.alloc("vstamp")
    names = []

    def stamp(name):
        if not stamps:
            return []
        k = nstamp[0]
        nstamp[0] += 1
        names.append(name)
        L = [I(f"s_memrealtime {sST(2 * (k & 1), 2)}")]
        if k:
            L.append(I(f"v_writelane_b32 {vST}, {sST(2 * ((k - 1) & 1))}, {k - 1}"))
        return L

    srd = {n: S.alloc("srd_" + n, 4, align=4) for n in ("x", "w1", "w2", "w3", "w4", "out", "dbg", "ws")}
    size = dict(x=1835008, w1=401408, w2=401408, w3=1605632, w4=1605632, out=1835008, dbg=256,
                ws=(WS_STAMP + 0x100000) if stamps else WS_SIZE)
    pidx = dict(x=0, w1=1, w2=2, w3=3, w4=4, out=5, dbg=6, ws=7)

    def srd_consts(n):
        return [I(f"s_mov_b32 {srd[n](2)}, {size[n]}"), I(f"s_mov_b32 {srd[n](3)}, 0x20000")]

    def srd_base(n):
        return [I(f"s_mov_b64 {srd[n](0, 2)}, s[{4 + 2 * pidx[n]}:{5 + 2 * pidx[n]}]")]

    sW = S.alloc("w"); sGrp = S.alloc("grp"); sHH = S.alloc("hh"); sJ = S.alloc("j"); sQ = S.alloc("q")
    sTB = S.alloc("tb"); sT0 = S.alloc("t0"); sT1 = S.alloc("t1"); sWK = S.alloc("wk")
    sOff = S.alloc("off")
    sSpin = S.alloc("spin")

    X(stamp("start"))
    E("s_cmp_ge_u32 s2, 256")
    E("s_cbranch_scc1 L_end")
    E("s_load_dwordx16 s[4:19], s[0:1], 0")
    E(f"s_lshr_b32 {sT0}, s2, 3")
    E(f"s_and_b32 {sQ}, {sT0}, 15")
    E(f"s_lshr_b32 {sT0}, {sT0}, 4")
    E(f"s_and_b32 {sGrp}, s2, 7")
    E(f"s_lshl_b32 {sGrp}, {sGrp}, 1")
    E(f"s_add_u32 {sGrp}, {sGrp}, {sT0}")
    E(f"s_cmp_lt_u32 {sQ}, 2")
    E("s_cbranch_scc1 L_helper")
    vL = V.alloc("lane"); vT0 = V.alloc("vt0"); vT1 = V.alloc("vt1"); vT2 = V.alloc("vt2")
    E(f"v_lshrrev_b32 {vT0}, 6, v0")
    E(f"v_and_b32 {vL}, 63, v0")
    E(f"v_readfirstlane_b32 {sW}, {vT0}")
    E(f"s_sub_u32 {sQ}, {sQ}, 2")
    E(f"s_and_b32 {sHH}, {sQ}, 1")
    E(f"s_lshr_b32 {sJ}, {sQ}, 1")
    E(f"s_lshl_b32 {sTB}, {sGrp}, 1")
    E(f"s_add_u32 {sTB}, {sTB}, {sHH}")
    E(f"s_lshl_b32 {sTB}, {sTB}, 6")
    vX0 = V.alloc("vx0"); vX1 = V.alloc("vx1"); vXh = V.alloc("vxh"); vL16 = V.alloc("l16")
    vO = V.alloc("vo")
    E(f"v_lshrrev_b32 {vT0}, 3, {vL}")
    E(f"v_and_b32 {vT1}, 7, {vL}")
    E(f"v_mul_u32_u24 {vO}, {RB}, {vT0}")
    E(f"v_lshl_add_u32 {vO}, {vT1}, 4, {vO}")
    E(f"v_lshlrev_b32 {vL16}, 4, {vL}")
    E(f"s_lshl_b32 {sT0}, {sW}, 4")
    E(f"s_add_u32 {sT0}, {sT0}, {sTB}")
    E(f"s_sub_u32 {sT0}, {sT0}, 2")
    E(f"s_mul_i32 {sT0}, {sT0}, {RB}")
    E(f"s_add_u32 {sT1}, {sTB}, {sW}")
    E(f"s_add_u32 {sT1}, {sT1}, 62")
    E(f"s_mul_i32 {sT1}, {sT1}, {RB}")
    E(f"v_add_u32 {vX0}, {sT0}, {vO}")
    E(f"v_add_u32 {vXh}, {sT1}, {vL16}")
    E(f"v_add_u32 {vX1}, {8 * RB}, {vX0}")
    E(f"v_cmp_gt_u32 vcc, 56, {vL}")
    E(f"v_mov_b32 {vT2}, {OOB}")
    X(srd_consts("x"))
    E(f"v_min_u32 {vX0}, {vT2}, {vX0}")
    E(f"v_cndmask_b32 {vXh}, {vT2}, {vXh}, vcc")
    XR = V.alloc("xr", 60, align=4, at=196)
    E("s_waitcnt lgkmcnt(0)")
    X(srd_base("x"))
    X(stamp("karg"))
    xl = [("h", 0)] + [(bb, p) for p in range(7) for bb in (0, 1)]
    for i, (bb, p) in enumerate(xl):
        va = vXh if bb == "h" else (vX0, vX1)[bb]
        E(f"buffer_load_dwordx4 {XR(4 * i, 4)}, {va}, {srd['x']}, 0 offen" + (f" offset:{128 * p}" if p else ""))
    V.release("vx0", "vx1", "vxh")

    for n in ("w1", "w2", "w3", "w4", "out", "dbg", "ws"):
        X(srd_base(n)); X(srd_consts(n))
    E(f"s_lshl_b32 {sWK}, {sW}, 10")
    E(f"s_mov_b32 {sSpin}, {o['spin']}")
    vI16 = V.alloc("i16"); vG = V.alloc("g"); vH = V.alloc("h5"); vNH = V.alloc("nh"); vC = V.alloc("c")
    vRow8 = V.alloc("row8")
    E(f"v_and_b32 {vI16}, 15, {vL}")
    E(f"v_lshrrev_b32 {vG}, 4, {vL}")
    E(f"v_lshrrev_b32 {vH}, 5, {vL}")
    E(f"v_and_b32 {vNH}, 1, {vG}")
    E(f"v_and_b32 {vC}, 3, {vL}")
    E(f"v_bfe_u32 {vRow8}, {vL}, 2, 3")
    vD4 = V.alloc("vd4", 4)
    vD1 = V.alloc("vd1"); vD2 = V.alloc("vd2"); vD3 = V.alloc("vd3")
    E(f"v_mul_u32_u24 {vT0}, {RB}, {vRow8}")
    E(f"v_lshl_add_u32 {vT0}, {vH}, 6, {vT0}")
    E(f"v_lshl_add_u32 {vD4(0)}, {vC}, 4, {vT0}")
    E(f"s_and_b32 {sT0}, {sW}, 1")
    E(f"s_lshl_b32 {sT0}, {sT0}, 5")
    E(f"v_xor_b32 {vD1}, {sT0}, {vD4(0)}")
    E(f"v_lshlrev_b32 {vT1}, 1, {vL}")
    E(f"v_and_b32 {vT1}, 32, {vT1}")
    E(f"v_xor_b32 {vD2}, {vT1}, {vD4(0)}")
    for i in range(1, 4):
        E(f"v_add_u32 {vD4(i)}, {i * (8 * RB - 1024)}, {vD4(0)}")
    E(f"v_bfe_u32 {vT0}, {vL}, 2, 2")
    E(f"v_mul_u32_u24 {vT0}, 3584, {vT0}")
    E(f"v_lshl_add_u32 {vT0}, {vG}, 6, {vT0}")
    E(f"v_lshl_add_u32 {vD3}, {vC}, 4, {vT0}")
    vXw = V.alloc("vxw"); vXwh = V.alloc("vxwh")
    E(f"v_lshrrev_b32 {vT0}, 3, {vL}")
    E(f"v_and_b32 {vT1}, 7, {vL}")
    E(f"v_mul_u32_u24 {vT0}, {XROW}, {vT0}")
    E(f"v_lshl_add_u32 {vT0}, {vT1}, 4, {vT0}")
    E(f"s_mul_i32 {sT0}, {sW}, {16 * XROW}")
    E(f"v_add_u32 {vXw}, {sT0}, {vT0}")
    E(f"s_add_u32 {sT0}, {sW}, 64")
    E(f"s_mul_i32 {sT0}, {sT0}, {XROW}")
    E(f"v_min_u32 {vT0}, {57 * 16}, {vL16}")
    E(f"v_add_u32 {vXwh}, {sT0}, {vT0}")
    sW12 = S.alloc("w12")
    E(f"s_mul_i32 {sW12}, {sW}, {8 * RB}")
    E(f"s_lshl_b32 {sT0}, {sJ}, 7")
    E(f"s_add_u32 {sW12}, {sW12}, {sT0}")
    vOnes = V.alloc("ones", 4, align=4)
    for i in range(4):
        E(f"v_mov_b32 {vOnes(i)}, 0x3f803f80")
    acc = V.alloc("stacc", 6)
    for i in range(6):
        E(f"v_mov_b32 {acc(i)}, 0")
    vTr = V.alloc("vtr")
    E(f"v_lshrrev_b32 {vT0}, 2, {vI16}")
    E(f"v_lshlrev_b32 {vT0}, 6, {vT0}")
    E(f"v_lshl_add_u32 {vTr}, {vC}, 3, {vT0}")
    vR1 = V.alloc("vr1")
    E(f"v_lshl_add_u32 {vT0}, {vG}, 10, {vTr}")
    E(f"v_lshl_add_u32 {vT0}, {vNH}, 5, {vT0}")
    E(f"s_and_b32 {sT0}, {sW}, 1")
    E(f"s_lshl_b32 {sT0}, {sT0}, 5")
    E(f"v_xor_b32 {vT0}, {sT0}, {vT0}")
    E(f"s_lshr_b32 {sT0}, {sW}, 1")
    E(f"s_lshl_b32 {sT0}, {sT0}, 9")
    E(f"s_add_u32 {sT0}, {sT0}, {16 * SL}")
    E(f"v_add_u32 {vR1}, {sT0}, {vT0}")
    vXf = V.alloc("vxf"); vS1 = V.alloc("vs1"); vRes = V.alloc("vres"); vS1w = V.alloc("vs1w")
    E(f"s_lshl_b32 {sT0}, {sJ}, 2")
    E(f"s_add_u32 {sT0}, {sT0}, {sW}")
    E(f"s_mul_i32 {sT0}, {sT0}, 37")
    E(f"s_lshr_b32 {sT0}, {sT0}, 8")
    E(f"s_lshl_b32 {sT0}, {sT0}, 2")
    E(f"s_lshr_b32 {sT0}, 0x4031, {sT0}")
    E(f"s_and_b32 {sT0}, {sT0}, 15")
    E(f"v_add_u32 {vT0}, {sT0}, {vI16}")
    E(f"v_mul_u32_u24 {vT1}, {XROW}, {vT0}")
    E(f"v_lshl_add_u32 {vXf}, {vG}, 4, {vT1}")
    E(f"v_lshlrev_b32 {vS1}, 3, {vT0}")
    E(f"s_lshl_b32 {sT0}, {sW}, 4")
    E(f"s_add_u32 {sT0}, {sT0}, 2")
    E(f"s_mul_i32 {sT0}, {sT0}, {XROW}")
    E(f"s_lshl_b32 {sT1}, {sJ}, 7")
    E(f"s_add_u32 {sT0}, {sT0}, {sT1}")
    E(f"v_mul_u32_u24 {vT1}, {XROW}, {vI16}")
    E(f"v_lshl_add_u32 {vT1}, {vG}, 3, {vT1}")
    E(f"v_add_u32 {vRes}, {sT0}, {vT1}")
    sM0 = S.alloc("m0mask", 2); sM1 = S.alloc("m1mask", 2)
    E(f"v_and_b32 {vT1}, 7, {vL}")
    E(f"v_lshrrev_b32 {vT0}, 3, {vL}")
    E(f"v_cmp_eq_u32 {sM0}, 0, {vT1}")
    E(f"v_cmp_gt_u32 {sM1}, 2, {vT1}")
    E(f"v_lshl_add_u32 {vT0}, {vT1}, 3, {vT0}")
    E(f"s_lshl_b32 {sT0}, {sW}, 4")
    E(f"v_add_u32 {vT0}, {sT0}, {vT0}")
    E(f"s_add_u32 {sT0}, {sW}, 64")
    E(f"v_mov_b32 {vT1}, {sT0}")
    E(f"v_cndmask_b32 {vT0}, {vT1}, {vT0}, {sM1}")
    E(f"v_lshlrev_b32 {vS1w}, 3, {vT0}")
    sA = S.alloc("ga", 2); sB = S.alloc("gb", 2)
    for i in range(2):
        E(f"s_mov_b32 {sA(i)}, {hex(f2u(GA))}")
        E(f"s_mov_b32 {sB(i)}, {hex(f2u(GB))}")

    def dma12(which, s, slot):
        va = vD1 if which == "w1" else vD2
        return [I(f"s_add_u32 m0, {sWK}, {slot * SL}"),
                I(f"s_add_u32 {sOff}, {sW12}, {32 * s * RB}"),
                I(f"buffer_load_dwordx4 {va}, {srd[which]}, {sOff} offen lds", tag=f"{which}_{s}",
                  lds=(slot * SL, (slot + 1) * SL, None))]
    sW3 = S.alloc("w3o")
    loc1 = [16 + s for s in range(14)]
    loc2 = [30 + p if p < 10 else 16 + p - 10 for p in range(14)]
    loc3 = [20, 21, 22, 23, 24, 25, 26, 27, 28, 29] + list(range(0, 18))

    def dma3(s):
        slot = loc3[s]
        return [I(f"s_add_u32 m0, {sWK}, {slot * SL}"),
                I(f"s_add_u32 {sOff}, {sW3}, {16 * s * 3584}"),
                I(f"buffer_load_dwordx4 {vD3}, {srd['w3']}, {sOff} offen lds", tag=f"w3_{s}",
                  lds=(slot * SL, (slot + 1) * SL, None))]
    E(f"s_mul_i32 {sW3}, {sW}, {4 * 3584}")
    E(f"s_lshl_b32 {sT0}, {sQ}, 8")
    E(f"s_add_u32 {sW3}, {sW3}, {sT0}")

    def dpp_red(r, mods):
        return [I(f"v_add_f32_dpp {r}, {r}, {r} {m} row_mask:0xf bank_mask:0xf") for m in mods]
    RED8 = ["quad_perm:[1,0,3,2]", "quad_perm:[2,3,0,1]", "row_half_mirror"]
    for i, (bb, p) in enumerate(xl):
        ai = 4 if bb == "h" else 2 * bb
        if bb == "h":
            E(f"ds_write_b128 {vXwh}, {XR(0, 4)}", lds=(0, ST1, None, "ximg"))
        else:
            E(f"ds_write_b128 {vXw}, {XR(4 * i, 4)} offset:{bb * 8 * XROW + 128 * p}", lds=(0, ST1, None, "ximg"))
        if i == 0:
            X(stamp("x0"))
        if i < 14:
            X(dma12("w1", i, loc1[i]))
        for c in range(4):
            E(f"v_dot2c_f32_bf16 {acc(ai)}, {vOnes(0)}, {XR(4 * i + c)}")
            E(f"v_dot2c_f32_bf16 {acc(ai + 1)}, {XR(4 * i + c)}, {XR(4 * i + c)}")
        if i == 1:
            a, b = acc(4), acc(5)
            for m in RED8 + ["row_mirror"]:
                X(dpp_red(a, [m])); X(dpp_red(b, [m]))
            E(f"v_permlane32_swap_b32 {a}, {b}")
            E(f"v_add_f32 {a}, {a}, {b}")
            E(f"v_mov_b32 {b}, {a}")
            E(f"v_permlane16_swap_b32 {a}, {b}")
            E(f"v_add_f32 {a}, {a}, {b}")
            E(f"v_mov_b32 {b}, {a}")
            E(f"v_permlane32_swap_b32 {a}, {b}")
    X(stamp("xall"))
    for m in RED8:
        for r in range(4):
            X(dpp_red(acc(r), [m]))
    E(f"v_cndmask_b32 {acc(0)}, {acc(2)}, {acc(0)}, {sM0}")
    E(f"v_cndmask_b32 {acc(1)}, {acc(3)}, {acc(1)}, {sM0}")
    E(f"v_cndmask_b32 {acc(0)}, {acc(4)}, {acc(0)}, {sM1}")
    E(f"v_cndmask_b32 {acc(1)}, {acc(5)}, {acc(1)}, {sM1}")

    def fin_stats(s, q, o0, o1, t):
        return [I(f"v_mul_f32 {s}, {hex(f2u(1.0 / 448))}, {s}"),
                I(f"v_mul_f32 {q}, {hex(f2u(1.0 / 448))}, {q}"),
                I(f"v_fma_f32 {t}, -{s}, {s}, {q}"),
                I(f"v_max_f32 {t}, 0, {t}"),
                I(f"v_add_f32 {t}, {hex(f2u(1e-5))}, {t}"),
                I(f"v_rsq_f32 {t}, {t}"),
                I(f"v_mul_f32 {o0}, {sA(0)}, {t}"),
                I(f"v_mul_f32 {o1}, {s}, {o0}"),
                I(f"v_sub_f32 {o1}, 0, {o1}")]
    X(fin_stats(acc(0), acc(1), acc(2), acc(3), acc(4)))
    E(f"ds_write_b64 {vS1w}, {acc(2, 2)} offset:{ST1}", lds=(ST1, ST1 + 544, None))
    V.release("vxw", "vxwh", "vs1w")
    S.release("m0mask", "m1mask")

    acc1 = V.alloc("acc1", 16, align=4, at=176); cs1 = V.alloc("cs1", 4, align=4, at=192)
    XF = V.alloc("xf", 32, align=4, at=144); WF1 = V.alloc("wf1", 8, align=4, at=136)
    st1 = V.alloc("st1", 8, at=128); res = V.alloc("res", 8, at=120)

    def rdX(s):
        return [I(f"ds_read_b128 {XF(16 * (s & 1) + 4 * m, 4)}, {vXf} offset:{m * 16 * XROW + 64 * s}", lds=(0, ST1, None))
                for m in range(4)]

    def rdW1(s):
        return [I(f"ds_read_b64_tr_b16 {WF1(4 * (s & 1) + 2 * rd, 2)}, {vR1} offset:{s * SL + 256 * rd}",
                  lds=(loc1[s] * SL, (loc1[s] + 1) * SL, None)) for rd in range(2)]
    vZero = V.alloc("zero"); vRdy = V.alloc("rdy")
    sRdy = S.alloc("rdyoff")
    E(f"v_mov_b32 {vZero}, 0")
    E(f"s_lshl_b32 {sRdy}, {sGrp}, 4")
    stages = o["stages"]
    w3_in_g1 = 4
    bg = [dma12("w2", p, loc2[p]) for p in range(14)] + [dma3(s) for s in range(w3_in_g1)]
    bg_at = {s: [] for s in range(14)}
    for k in range(10):
        bg_at[k].append(bg[k])
    for k in range(10, 18):
        bg_at[10 + (k - 10) // 2].append(bg[k])
    s0 = 0
    for si, s1 in enumerate(stages):
        X([waitvm(f"w1_{s1 - 1}"), waitlg()])
        E("s_barrier")
        X(stamp(f"g1s{si}"))
        X(rdW1(s0))
        if si == 0:
            X(rdX(0))
        for s in range(s0, s1):
            nx = rdX(s + 1) if s + 1 < 14 else []
            nw = rdW1(s + 1) if s + 1 < s1 else []
            if s == 13:
                nx = [I(f"ds_read_b64 {st1(2 * m, 2)}, {vS1} offset:{ST1 + 128 * m}", lds=(ST1, ST1 + 544, None)) for m in range(4)]
                nw = [I(f"ds_read_b64 {res(2 * n, 2)}, {vRes} offset:{32 * n}", lds=(0, ST1, None)) for n in range(4)]
            fill = nw + nx
            wf = WF1(4 * (s & 1), 4)
            P.append(waitregs(wf, XF(16 * (s & 1), 16)))
            mf = [I(f"v_mfma_f32_16x16x32_bf16 {cs1}, {wf}, {vOnes}, {cs1 if s else 0}")]
            mf += [I(f"v_mfma_f32_16x16x32_bf16 {acc1(4 * m, 4)}, {wf}, {XF(16 * (s & 1) + 4 * m, 4)}, {acc1(4 * m, 4) if s else 0}")
                   for m in range(4)]
            atoms = [[f] for f in fill] + bg_at[s]
            X(flat(weave([[m] for m in mf], atoms)))
            if s == 8:
                E(f"buffer_load_dword {vRdy}, {vZero}, {srd['dbg']}, {sRdy} offen sc1")
        s0 = s1
    X([waitlg()])
    E("s_barrier")
    X(stamp("g1done"))
    V.release("xr", "stacc", "xf", "wf1", "vr1", "vxf", "vs1", "vres", "vd1", "vd2")

    def gelu_pk(z, u, st, cs, dst, npair):
        L = []
        rng = range(npair)
        L += [[I(f"v_pk_mul_f32 {z(2 * i, 2)}, {z(2 * i, 2)}, {st(i)} op_sel_hi:[1,0]")] for i in rng]
        L += [[I(f"v_pk_fma_f32 {z(2 * i, 2)}, {cs(i)}, {st(i)}, {z(2 * i, 2)} op_sel:[0,1,0]")] for i in rng]
        L += [[I(f"v_pk_fma_f32 {u(2 * i, 2)}, {z(2 * i, 2)}, {z(2 * i, 2)}, {sB}")] for i in rng]
        L += [[I(f"v_pk_mul_f32 {u(2 * i, 2)}, {z(2 * i, 2)}, {u(2 * i, 2)}")] for i in rng]
        L += [[I(f"v_exp_f32 {u(k)}, -{u(k)}")] for k in range(2 * npair)]
        L += [[I(f"v_pk_fma_f32 {u(2 * i, 2)}, {u(2 * i, 2)}, {sA}, {sA}")] for i in rng]
        L += [[I(f"v_rcp_f32 {u(k)}, {u(k)}")] for k in range(2 * npair)]
        L += [[I(f"v_pk_mul_f32 {z(2 * i, 2)}, {z(2 * i, 2)}, {u(2 * i, 2)}")] for i in rng]
        L += [[I(f"v_cvt_pk_bf16_f32 {dst(i)}, {z(2 * i)}, {z(2 * i + 1)}")] for i in rng]
        return L
    gt = V.alloc("gt", 16, align=4, at=144); hp = V.alloc("hp", 8, align=4, at=160)
    vHs = V.alloc("vhs"); sHs = S.alloc("hs", 2, align=1); sHG = S.alloc("hg")
    pre = [I(f"v_mul_u32_u24 {vT0}, 14336, {vH}"),
           I(f"v_lshl_add_u32 {vT0}, {vNH}, 8, {vT0}"),
           I(f"v_lshl_add_u32 {vHs}, {vI16}, 4, {vT0}"),
           I(f"s_mul_i32 {sHG}, {sTB}, 896"),
           I(f"s_add_u32 {sHG}, {sHG}, {WS_H}"),
           I(f"s_lshl_b32 {sT0}, {sJ}, 11"),
           I(f"s_lshl_b32 {sT1}, {sW}, 9"),
           I(f"s_add_u32 {sT0}, {sT0}, {sT1}"),
           I(f"s_add_u32 {sHs(0)}, {sHG}, {sT0}"),
           I(f"s_add_u32 {sHs(1)}, {sHs(0)}, 28672")]
    X(pre)
    g = gelu_pk(acc1, gt, lambda i: st1(2 * (i >> 1), 2), lambda i: cs1(2 * (i & 1), 2), hp, 8)
    X(flat(weave(g, [dma3(s) for s in range(w3_in_g1, 12)])))
    for a, b in ((0, 2), (1, 3), (4, 6), (5, 7)):
        E(f"v_permlane32_swap_b32 {hp(a)}, {hp(b)}")
    E(f"buffer_store_dwordx4 {hp(0, 4)}, {vHs}, {srd['ws']}, {sHs(0)} offen {XST}")
    E(f"buffer_store_dwordx4 {hp(4, 4)}, {vHs}, {srd['ws']}, {sHs(1)} offen {XST}", tag="hst")
    X(stamp("hstored"))
    V.release("acc1", "cs1", "st1", "gt", "vhs")
    S.release("hs")

    nspin = [0]

    def check(vreg, vaddr, which, soff, imm):
        k = nspin[0]
        nspin[0] += 1
        off = f" offset:{imm}" if imm else ""
        tail.append(f"""L_spin{k}:
s_sub_u32 {sSpin}, {sSpin}, 1
s_cmp_lt_i32 {sSpin}, 0
s_cbranch_scc1 L_back{k}
buffer_load_dword {vreg}, {vaddr}, {srd[which]}, {soff} offen{off} sc1
s_waitcnt vmcnt(0)
v_cmp_eq_u32 vcc, 0, {vreg}
s_cbranch_vccnz L_spin{k}
s_branch L_back{k}""")
        return [I(f"v_cmp_eq_u32 vcc, 0, {vreg}"), I(f"s_cbranch_vccnz L_spin{k}"), I(f"L_back{k}:")]

    X([waitvm("w2_13")])
    X(check(vRdy, vZero, "dbg", sRdy, 0))
    E("s_barrier")
    V.release("rdy", "zero")
    S.release("rdyoff")
    vR2 = V.alloc("vr2", 4)
    E(f"v_lshl_add_u32 {vT0}, {vH}, 11, {vTr}")
    E(f"v_mul_u32_u24 {vT1}, {256 + 32}, {vNH}")
    E(f"v_add_u32 {vT0}, {vT0}, {vT1}")
    E(f"v_add_u32 {vR2(0)}, {30 * SL}, {vT0}")
    E(f"v_add_u32 {vR2(2)}, {16 * SL}, {vT0}")
    E(f"v_xor_b32 {vR2(1)}, 32, {vR2(0)}")
    E(f"v_xor_b32 {vR2(3)}, 32, {vR2(2)}")
    AW = R("a", 0, 224)
    r2 = []
    for p in range(14):
        for nt in range(4):
            for rd in range(2):
                b = (0 if p < 10 else 2) + (nt & 1)
                off = (p if p < 10 else p - 10) * SL + rd * 1024 + (nt >> 1) * 512
                r2.append([I(f"ds_read_b64_tr_b16 {AW((p * 4 + nt) * 4 + 2 * rd, 2)}, {vR2(b)} offset:{off}",
                             lds=(loc2[p] * SL, (loc2[p] + 1) * SL, None))])
    X(flat(weave(r2, [dma3(s) for s in range(12, 22)], end=100)))
    V.release("vr2")
    vPoll1 = V.alloc("poll1"); vPoll2 = V.alloc("poll2"); vFs = V.alloc("vfs"); vPv = V.alloc("pv", 2, align=1)
    sFl = S.alloc("fl"); sFlH = S.alloc("flh"); sFlA = S.alloc("fla"); sFlB = S.alloc("flb")
    E(f"v_and_b32 {vT0}, 7, {vL}")
    E(f"v_min_u32 {vT0}, 6, {vT0}")
    E(f"v_lshlrev_b32 {vPoll1}, 2, {vT0}")
    E(f"v_bfe_u32 {vT0}, {vL}, 3, 1")
    E(f"v_lshl_add_u32 {vPoll2}, {vT0}, 8, {vPoll1}")
    E(f"s_lshl_b32 {sT0}, {sJ}, 2")
    E(f"v_mov_b32 {vT0}, {sT0}")
    E(f"v_cmp_eq_u32 vcc, 0, v0")
    E(f"s_lshl_b32 {sFl}, {sGrp}, 12")
    E(f"s_lshl_b32 {sT0}, {sHH}, 8")
    E(f"v_cndmask_b32 {vFs}, {vT2}, {vT0}, vcc")
    E(f"s_add_u32 {sFlH}, {sFl}, {sT0}")
    E(f"s_lshl_b32 {sT0}, {sHH}, 10")
    E(f"s_add_u32 {sFlA}, {sFl}, {sT0}")
    E(f"s_xor_b32 {sT0}, {sT0}, 1024")
    E(f"s_add_u32 {sFlB}, {sFl}, {sT0}")

    def flag(soff, imm):
        return [I(f"buffer_store_dword {vOnes(0)}, {vFs}, {srd['ws']}, {soff} offen" + (f" offset:{imm}" if imm else "") + " sc1")]

    def poll(vreg, vaddr, soff, imm):
        return [I(f"buffer_load_dword {vreg}, {vaddr}, {srd['ws']}, {soff} offen" + (f" offset:{imm}" if imm else "") + " sc1")]
    X([waitvm("hst"), waitlg()])
    E("s_barrier")
    X(flag(sFlH, 0))
    X(stamp("flag1"))
    V.release("hp")
    W3 = V.alloc("w3", 112, align=4, at=144)
    vR3 = V.alloc("vr3", 2, align=1)
    E(f"v_lshl_add_u32 {vT0}, {vH}, 10, {vTr}")
    E(f"v_lshl_add_u32 {vT0}, {vNH}, 5, {vT0}")
    E(f"s_lshl_b32 {sT0}, {sW}, 8")
    E(f"v_add_u32 {vR3(0)}, {sT0}, {vT0}")
    E(f"v_add_u32 {vR3(1)}, {15 * SL}, {vR3(0)}")

    def rdW3(s):
        slot = loc3[s]
        b, off = (0, slot * SL) if slot < 15 else (1, (slot - 15) * SL)
        return [[I(f"ds_read_b64_tr_b16 {W3(4 * s + 2 * rd, 2)}, {vR3(b)} offset:{off + 2048 * rd}",
                   lds=(slot * SL, (slot + 1) * SL, None))] for rd in range(2)]
    X(flat(weave(sum([rdW3(s) for s in range(12)], []), [dma3(s) for s in range(22, 28)])))
    X(poll(vPv(0), vPoll1, sFlH, 0))
    V.release("vd3")
    S.release("w3o", "w12")
    acc2 = V.alloc("acc2", 16, align=4, at=128)
    for k in range(8):
        E(f"v_lshlrev_b32 {acc2(2 * k)}, 16, {res(k)}")
        E(f"v_and_b32 {acc2(2 * k + 1)}, 0xffff0000, {res(k)}")
    V.release("res")
    S.free |= set(range(4, 20))
    sW4 = S.alloc("w4t", 14, align=1); sG = S.alloc("gt", 14, align=1)
    sRot = S.alloc("rot"); sGb = S.alloc("gb0"); sW4b = S.alloc("w4b")
    E(f"s_and_b32 {sRot}, {sGrp}, 1")
    E(f"s_mul_i32 {sRot}, {sRot}, 3")
    E(f"s_add_u32 {sRot}, {sRot}, {sJ}")
    E(f"s_mul_i32 {sW4b}, {sW}, {32 * RB}")
    E(f"s_lshl_b32 {sT0}, {sJ}, 7")
    E(f"s_add_u32 {sW4b}, {sW4b}, {sT0}")
    E(f"s_mul_i32 {sGb}, {sGrp}, 458752")
    E(f"s_mul_i32 {sT0}, {sW}, 28672")
    E(f"s_add_u32 {sGb}, {sGb}, {sT0}")
    E(f"s_add_u32 {sGb}, {sGb}, {WS_G}")
    sGs = S.alloc("gs", 2, align=1)
    E(f"s_lshl_b32 {sT0}, {sQ}, 11")
    E(f"s_add_u32 {sT0}, {sT0}, {sGb}")
    E(f"s_mul_i32 {sT1}, {sHH}, 229376")
    E(f"s_add_u32 {sGs(0)}, {sT0}, {sT1}")
    E(f"s_add_u32 {sGb}, {sGb}, {sT1}")
    E(f"s_sub_u32 {sT1}, 229376, {sT1}")
    E(f"s_add_u32 {sGs(1)}, {sT0}, {sT1}")
    for jj in range(7):
        E(f"s_cmp_ge_u32 {sRot}, 7")
        E(f"s_cselect_b32 {sT0}, 7, 0")
        E(f"s_sub_u32 {sRot}, {sRot}, {sT0}")
        E(f"s_lshl_b32 {sT0}, {sRot}, 1")
        E(f"s_add_u32 {sT0}, {sT0}, {sHH}")
        for c in range(2):
            if c:
                E(f"s_xor_b32 {sT0}, {sT0}, 1")
            E(f"s_mul_i32 {sT1}, {sT0}, 114688")
            E(f"s_add_u32 {sW4(7 * c + jj)}, {sT1}, {sW4b}")
            E(f"s_lshl_b32 {sT1}, {sT0}, 11")
            E(f"s_add_u32 {sG(7 * c + jj)}, {sT1}, {sGb}")
        E(f"s_add_u32 {sRot}, {sRot}, 1")
    S.release("rot", "gb0", "w4b")
    E(f"s_mul_i32 {sT0}, {sW}, 14336")
    E(f"s_add_u32 {sHG}, {sHG}, {sT0}")
    X(check(vPv(0), vPoll1, "ws", sFlH, 0))
    X(stamp("poll1"))
    HR = V.alloc("hr", 56, align=4, at=72)
    hl = []
    for p in range(14):
        a = []
        if p and p % 4 == 0:
            a.append(I(f"s_add_u32 {sHG}, {sHG}, 4096"))
        a.append(I(f"buffer_load_dwordx4 {HR(4 * p, 4)}, {vL16}, {srd['ws']}, {sHG} offen" +
                   (f" offset:{1024 * (p % 4)}" if p % 4 else "") + f" {XLD}"))
        hl.append(a)
    X(flat(hl[:4]))
    X([waitlg()])
    E("s_barrier")
    X(flat(weave(hl[4:], sum([rdW3(s) for s in range(12, 28)], []))))
    V.release("vr3")
    S.release("hg")

    sW2K = S.alloc("w2k")
    E(f"s_lshl_b32 {sW2K}, {sW}, 11")
    loc4 = [20, 22, 24, 26,
            28, 30, 32, 34, 36, 38,
            20, 22, 24, 26,
            28, 30, 32, 34, 36,
            2, 0, 4, 6, 8, 10, 12,
            14, 16]

    def dma4(hu):
        u, s2 = hu >> 1, hu & 1
        slot = loc4[hu]
        base = slot * SL - 2048 * s2
        L = [I(f"s_add_u32 m0, {sW2K}, {base}") if base >= 0 else I(f"s_sub_u32 m0, {sW2K}, {-base}")]
        assert base >= 0
        at = []
        for k in range(2):
            i4 = 2 * s2 + k
            at.append(L + [I(f"buffer_load_dwordx4 {vD4(i4)}, {srd['w4']}, {sW4(u)} offen" + (f" offset:{1024 * i4}" if i4 else "") + " lds",
                             tag=f"w4_{hu}_{k}", lds=(slot * SL, (slot + 2) * SL, ("w4", slot), f"w4_{hu}"))])
            L = []
        return at
    vR4 = V.alloc("vr4", 3, align=1)
    E(f"v_lshl_add_u32 {vT0}, {vH}, 8, {vTr}")
    E(f"v_lshl_add_u32 {vT0}, {vNH}, 5, {vT0}")
    E(f"v_add_u32 {vR4(0)}, {sW2K}, {vT0}")
    E(f"v_add_u32 {vR4(1)}, {14 * SL}, {vR4(0)}")
    E(f"v_add_u32 {vR4(2)}, {28 * SL}, {vR4(0)}")

    def rdW4(hu):
        slot = loc4[hu]
        b = slot // 14
        at = []
        for nt in range(2):
            for rd in range(2):
                a = [waitvm(f"w4_{hu}_1")] if not at else []
                a.append(I(f"ds_read_b64_tr_b16 {AW((hu * 2 + nt) * 4 + 2 * rd, 2)}, {vR4(b)} offset:{(slot - 14 * b) * SL + rd * 1024 + nt * 512}",
                           lds=(slot * SL, (slot + 2) * SL, ("w4", slot))))
                at.append(a)
        return at

    g2 = []
    for p in range(14):
        for nt in range(4):
            g2.append([I(f"v_mfma_f32_16x16x32_bf16 {acc2(4 * nt, 4)}, {AW((p * 4 + nt) * 4, 4)}, {HR(4 * p, 4)}, {acc2(4 * nt, 4)}")])
    vX1s = V.alloc("vx1s"); vSts = V.alloc("vsts"); sX1 = S.alloc("x1b"); sX1s = S.alloc("x1s"); sSt = S.alloc("stb"); sSts = S.alloc("sts")
    E(f"v_lshlrev_b32 {vT0}, 9, {vG}")
    E(f"v_lshl_add_u32 {vX1s}, {vI16}, 4, {vT0}")
    E(f"v_lshlrev_b32 {vT0}, 6, {vH}")
    E(f"v_lshl_add_u32 {vSts}, {vI16}, 2, {vT0}")
    E(f"s_mul_i32 {sX1}, {sGrp}, 114688")
    E(f"s_add_u32 {sX1}, {sX1}, {WS_X1}")
    E(f"s_lshl_b32 {sSt}, {sGrp}, 13")
    E(f"s_add_u32 {sSt}, {sSt}, {WS_ST}")
    E(f"s_lshr_b32 {sT0}, {sW}, 1")
    E(f"s_lshl_b32 {sT1}, {sHH}, 1")
    E(f"s_add_u32 {sT0}, {sT0}, {sT1}")
    E(f"s_mul_i32 {sX1s}, {sT0}, 28672")
    E(f"s_mul_i32 {sSts}, {sT0}, 1792")
    E(f"s_add_u32 {sX1s}, {sX1s}, {sX1}")
    E(f"s_add_u32 {sSts}, {sSts}, {sSt}")
    E(f"s_lshl_b32 {sT0}, {sJ}, 12")
    E(f"s_add_u32 {sX1s}, {sX1s}, {sT0}")
    E(f"s_lshl_b32 {sT0}, {sJ}, 8")
    E(f"s_add_u32 {sSts}, {sSts}, {sT0}")
    E(f"s_and_b32 {sT0}, {sW}, 1")
    E(f"s_lshl_b32 {sT1}, {sT0}, 8")
    E(f"s_add_u32 {sX1s}, {sX1s}, {sT1}")
    E(f"s_lshl_b32 {sT1}, {sT0}, 7")
    E(f"s_add_u32 {sSts}, {sSts}, {sT1}")
    X(flat(weave(g2, sum([dma4(h) for h in range(4)], []), start=8)))
    X(stamp("g2done"))
    V.release("hr")
    xp = V.alloc("xp", 8, align=4, at=72); sq = V.alloc("sq", 2, align=1)
    E(f"v_mov_b32 {sq(0)}, 0")
    E(f"v_mov_b32 {sq(1)}, 0")
    for k in range(8):
        E(f"v_cvt_pk_bf16_f32 {xp(k)}, {acc2(2 * k)}, {acc2(2 * k + 1)}")
    for a, b in ((0, 2), (1, 3), (4, 6), (5, 7)):
        E(f"v_permlane32_swap_b32 {xp(a)}, {xp(b)}")
    E(f"buffer_store_dwordx4 {xp(0, 4)}, {vX1s}, {srd['ws']}, {sX1s} offen {XST}")
    E(f"buffer_store_dwordx4 {xp(4, 4)}, {vX1s}, {srd['ws']}, {sX1s} offen offset:2048 {XST}")
    for k in range(8):
        E(f"v_dot2c_f32_bf16 {sq(0)}, {vOnes(0)}, {xp(k)}")
        E(f"v_dot2c_f32_bf16 {sq(1)}, {xp(k)}, {xp(k)}")
    E(f"v_permlane32_swap_b32 {sq(0)}, {sq(1)}")
    E(f"v_add_f32 {sq(0)}, {sq(0)}, {sq(1)}")
    E(f"v_mov_b32 {sq(1)}, {sq(0)}")
    E(f"v_permlane16_swap_b32 {sq(0)}, {sq(1)}")
    E(f"v_add_f32 {sq(0)}, {sq(0)}, {sq(1)}")
    E(f"buffer_store_dword {sq(0)}, {vSts}, {srd['ws']}, {sSts} offen {XST}", tag="x1st")
    X(stamp("x1stored"))
    V.release("acc2", "vx1s")
    S.release("x1s", "sts")
    cs3 = V.alloc("cs3", 16, align=4, at=128)
    c3 = [[I(f"v_mfma_f32_32x32x16_bf16 {cs3}, {W3(4 * s, 4)}, {vOnes}, {cs3 if s else 0}")] for s in range(28)]
    fl = sum([dma4(h) for h in range(4, 10)], [])
    rd = sum([rdW4(h) for h in range(0, 4)], [])
    c3a = weave(weave(c3[:20], fl), rd)
    X(flat(c3a))
    X([waitvm("x1st"), waitlg()])
    E("s_barrier")
    X(flag(sFlH, 512))
    X(stamp("flag2"))
    V.release("xp", "sq")
    X(flat(weave(c3[20:], sum([dma4(h) for h in range(10, 14)], []))))
    X(poll(vPv(0), vPoll2, sFl, 512))
    X(flat(sum([rdW4(h) for h in range(4, 10)], [])))
    sX1t = S.alloc("x1t", 2, align=1); sM7 = S.alloc("m7")
    vStl = V.alloc("vstl"); vL16b = V.alloc("l16b"); vL16c = V.alloc("l16c")
    E(f"s_mul_i32 {sM7}, {sW}, 7168")
    E(f"s_add_u32 {sX1}, {sX1}, {sM7}")
    E(f"s_mul_i32 {sT0}, {sHH}, 57344")
    E(f"s_add_u32 {sX1t(0)}, {sX1}, {sT0}")
    E(f"s_sub_u32 {sT0}, 57344, {sT0}")
    E(f"s_add_u32 {sX1t(1)}, {sX1}, {sT0}")
    E(f"v_lshl_add_u32 {vStl}, {vNH}, 7, {vSts}")
    E(f"v_add_u32 {vL16b}, 114688, {vL16}")
    E(f"v_add_u32 {vL16c}, {14 * SL}, {vL16}")
    E(f"s_and_b32 {sT0}, {sW}, 1")
    E(f"s_xor_b32 {sT0}, {sT0}, {sHH}")
    E(f"s_lshl_b32 {sT0}, {sT0}, 1")
    E(f"s_lshr_b32 {sT1}, {sW}, 1")
    E(f"s_add_u32 {sT0}, {sT0}, {sT1}")
    E(f"s_mul_i32 {sT0}, {sT0}, 1792")
    E(f"s_add_u32 {sSt}, {sSt}, {sT0}")
    V.release("vsts")

    def dmaX(st):
        at = []
        for k in range(7):
            a = []
            if k % 4 == 0:
                a.append(I(f"s_add_u32 m0, {sM7}, {st * 7 * SL + 4096 * (k // 4)}"))
                a.append(I(f"s_add_u32 {sOff}, {sX1t(st & 1)}, {(st >> 1) * 28672 + 4096 * (k // 4)}"))
            a.append(I(f"buffer_load_dwordx4 {vL16}, {srd['ws']}, {sOff} offen" + (f" offset:{1024 * (k % 4)}" if k % 4 else "") + f" {XLD} lds",
                       tag=f"x1_{st}_{k}", lds=(st * 7 * SL, (st + 1) * 7 * SL, None, f"x1_{st}")))
            at.append(a)
        return at
    X(check(vPv(0), vPoll2, "ws", sFl, 512))
    X(stamp("poll2"))
    X(flat(dmaX(0)))
    sp = V.alloc("gp", 8, align=4, at=56)
    for jj in range(7):
        E(f"buffer_load_dword {sp(jj)}, {vStl}, {srd['ws']}, {sSt} offen" + (f" offset:{256 * jj}" if jj else "") + f" {XLD}")
    X(flat(weave(dmaX(1), sum([rdW4(h) for h in range(10, 14)], []))))
    V.release("vstl", "poll2")
    S.release("stb", "x1b", "fl")
    vS2 = V.alloc("vs2"); vS2w = V.alloc("vs2w"); vRr = V.alloc("vrr"); vRd = V.alloc("vrd"); vRw = V.alloc("vrw")
    E(f"v_and_b32 {vT0}, 31, {vL}")
    E(f"v_lshlrev_b32 {vT0}, 3, {vT0}")
    E(f"v_add_u32 {vS2}, {ST2}, {vT0}")
    E(f"s_lshl_b32 {sT0}, {sW}, 8")
    E(f"v_add_u32 {vS2w}, {sT0}, {vS2}")
    E(f"v_lshrrev_b32 {vT0}, 3, {vL}")
    E(f"s_lshl_b32 {sT0}, {sW}, 3")
    E(f"v_add_lshl_u32 {vT0}, {vT0}, {sT0}, 4")
    E(f"v_and_b32 {vT1}, 7, {vL}")
    E(f"v_mul_u32_u24 {vRd}, {RED_O}, {vT1}")
    E(f"v_add_u32 {vRd}, {vRd}, {vT0}")
    E(f"v_bfe_u32 {vT1}, {vL}, 1, 2")
    E(f"v_lshl_add_u32 {vT0}, {vT1}, 10, {vT0}")
    E(f"v_and_b32 {vT1}, 1, {vL}")
    E(f"v_lshl_add_u32 {vT0}, {vT1}, 3, {vT0}")
    E(f"s_lshl_b32 {sT0}, {sJ}, 12")
    E(f"v_add_u32 {vRr}, {sT0}, {vT0}")
    E(f"s_mul_i32 {sT0}, {sW}, {RED_W}")
    E(f"v_add_u32 {vRw}, {sT0}, {vL16}")
    V.release("i16", "g", "h5", "nh", "c", "row8", "vtr", "vt2")

    acc3 = V.alloc("acc3", 32, align=4, at=96); XB = V.alloc("xb", 32, align=4, at=64)
    gt = V.alloc("gt3", 4, align=2); gp = sp; st2 = V.alloc("st2", 2, align=2)
    rres = V.alloc("rres", 8, align=2, at=48)

    def rdXB(st, s):
        va, off = (vL16, st * 7 * SL) if st < 2 else (vL16c, (st - 2) * 7 * SL)
        return I(f"ds_read_b128 {XB(4 * (s & 7), 4)}, {va} offset:{off + 1024 * s}", lds=(st * 7 * SL, (st + 1) * 7 * SL, None))

    def m3(st):
        a = acc3(16 * (st & 1), 16)
        gl = []
        for s in range(28):
            gq = []
            if s % 4 == 0:
                gq.append(waitregs(XB(4 * (s & 7), 16)))
            gq.append(I(f"v_mfma_f32_32x32x16_bf16 {a}, {W3(4 * s, 4)}, {XB(4 * (s & 7), 4)}, {a if s else 0}"))
            if s + 4 < 28:
                gq.append(rdXB(st, s + 4))
            gl.append(gq)
        return [rdXB(st, s) for s in range(4)], gl

    def gstore(st, f):
        return I(f"buffer_store_dwordx4 {gp(4 * f, 4)}, {vL16b if st >> 1 else vL16}, {srd['ws']}, {sGs(st & 1)} offen" +
                 (" offset:1024" if f else "") + f" {XST}", tag=f"gst_{st}_{f}")

    def gelu3(st):
        a = R("v", acc3.base + 16 * (st & 1), 16)
        L = [[I(f"ds_read_b64 {st2}, {vS2} offset:{256 * st}", lds=(ST2, ST2 + 1024, None))]]
        for b in range(4):
            z = [a(4 * b + i) for i in range(4)]
            u = [gt(i) for i in range(4)]
            L += [[I(f"v_mul_f32 {z[i]}, {z[i]}, {st2(0)}")] for i in range(4)]
            L += [[I(f"v_fmac_f32 {z[i]}, {cs3(4 * b + i)}, {st2(1)}")] for i in range(4)]
            L += [[I(f"v_fma_f32 {u[i]}, {z[i]}, {z[i]}, {sB(0)}")] for i in range(4)]
            L += [[I(f"v_mul_f32 {u[i]}, {z[i]}, {u[i]}")] for i in range(4)]
            L += [[I(f"v_exp_f32 {u[i]}, -{u[i]}")] for i in range(4)]
            L += [[I(f"v_fma_f32 {u[i]}, {u[i]}, {sA(0)}, {sA(0)}")] for i in range(4)]
            L += [[I(f"v_rcp_f32 {u[i]}, {u[i]}")] for i in range(4)]
            L += [[I(f"v_mul_f32 {z[i]}, {z[i]}, {u[i]}")] for i in range(4)]
            L += [[I(f"v_cvt_pk_bf16_f32 {gp(2 * b + i)}, {z[2 * i]}, {z[2 * i + 1]}")] for i in range(2)]
            if b & 1:
                L.append([gstore(st, b >> 1)])
        return L

    def rd_res(t):
        st = 2 * t
        return [[I(f"ds_read_b64 {rres(4 * t + 2 * h, 2)}, {vRr} offset:{512 * h}", lds=(st * 7 * SL, (st + 1) * 7 * SL, None))] for h in range(2)]

    def publish(st):
        return flag(sFlB if st & 1 else sFlA, 1024 + 256 * st) + poll(vPv(st & 1), vPoll1, sFlA, 1024 + 256 * st)

    X([waitvm("x1_0_6"), waitlg()])
    E("s_barrier")
    X(stamp("t0"))
    h, gl = m3(0)
    stf = [[I(f"v_add_f32 {sp(0)}, {sp(0)}, {sp(k)}")] for k in range(1, 7)]
    stf += [[I(f"v_mov_b32 {sp(1)}, {sp(0)}")], [I(f"v_permlane32_swap_b32 {sp(0)}, {sp(1)}")]]
    stf += [[x] for x in fin_stats(sp(0), sp(1), sp(2), sp(3), sp(4))]
    stf += [[I(f"ds_write_b64 {vS2w}, {sp(2, 2)}", lds=(ST2, ST2 + 1024, None))]]
    stf += rd_res(0) + [[I(f"v_add_u32 {vRr}, {14 * SL}, {vRr}")]]
    X(h); X(flat(weave(weave(gl, dmaX(2) + dmaX(3)), stf)))
    V.release("vs2w")
    S.release("x1t", "m7")
    X([waitvm("x1_1_6"), waitlg()])
    E("s_barrier")
    X(stamp("t1"))
    h, gl = m3(1)
    X(h); X(flat(weave(weave(gl, gelu3(0), start=1), sum([dma4(k) for k in range(14, 19)], []))))
    X([waitvm("x1_2_6"), waitlg()])
    E("s_barrier")
    X(stamp("t2"))
    h, gl = m3(2)
    X(h); X(flat(weave(weave(gl, gelu3(1) + rd_res(1), start=1), sum([dma4(k) for k in range(19, 24)], []))))
    X([waitvm("x1_3_6"), waitvm("gst_0_1"), waitlg()])
    E("s_barrier")
    X(publish(0))
    X(stamp("t3"))
    h, gl = m3(3)
    X(h); X(flat(weave(weave(gl, gelu3(2), start=1), sum([dma4(k) for k in range(24, 28)], []))))
    V.release("xb", "vrr", "l16c", "vd4")
    X([waitvm("gst_1_1"), waitlg()])
    E("s_barrier")
    X(check(vPv(0), vPoll1, "ws", sFlA, 1024))
    X(publish(1))
    X(stamp("m3done"))

    GBUF = W3

    def gload(st, k):
        u = 7 * (st & 1) + (k >> 1)
        return [I(f"buffer_load_dwordx4 {GBUF(56 * (st & 1) + 4 * k, 4)}, {vL16b if st >> 1 else vL16}, {srd['ws']}, {sG(u)} offen" +
                  (" offset:1024" if k & 1 else "") + f" {XLD}")]
    acc4 = [R("a", 224, 32), V.alloc("acc4b", 32, align=4)]

    def m4(st):
        a = acc4[st >> 1]
        gl = []
        for k in range(14):
            hu = 14 * (st & 1) + k
            for nt in range(2):
                first = (st & 1) == 0 and k == 0
                gl.append([I(f"v_mfma_f32_32x32x16_bf16 {a(16 * nt, 16)}, {AW((hu * 2 + nt) * 4, 4)}, {GBUF(56 * (st & 1) + 4 * k, 4)}, {0 if first else a(16 * nt, 16)}")])
        return gl
    X(flat(weave(gelu3(3), [gload(0, k) for k in range(14)])))
    X([waitvm("gst_2_1"), waitlg()])
    E("s_barrier")
    X(check(vPv(1), vPoll1, "ws", sFlA, 1024 + 256))
    X(publish(2))
    X(stamp("gelu3done"))
    V.release("acc3", "gt3", "st2", "cs3", "vs2")
    X(flat(weave(weave(m4(0), [gload(1, k) for k in range(14)]), sum([rdW4(k) for k in range(14, 28)], []))))
    X([waitvm("gst_3_1"), waitlg()])
    E("s_barrier")
    X(check(vPv(0), vPoll1, "ws", sFlA, 1024 + 512))
    X(publish(3))
    X(stamp("g4s0"))
    V.release("gp", "vr4")
    X(flat(weave(m4(1), [gload(2, k) for k in range(14)])))
    X(check(vPv(1), vPoll1, "ws", sFlA, 1024 + 768))
    X(stamp("g4s1"))

    def red_write(t):
        base = RED_B if t else RED_A
        L = []
        if t == 0:
            L.append([I(f"v_add_u32 {vT0}, {RED_A}, {vRw}")])
        va = vRw if t else vT0
        L += [[I(f"ds_write_b128 {va}, {acc4[t](4 * k, 4)} offset:{k * RED_O}", lds=(base, base + 4 * RED_W, None, f"red{t}"))] for k in range(8)]
        return L
    rp = V.alloc("rp", 32, align=4); ro = V.alloc("ro", 8, align=4); op = V.alloc("op", 4, align=4)
    sO = S.alloc("so")

    def red_final(t, pk):
        base = RED_B if t else RED_A
        L = []
        if t == 0:
            L.append([I(f"v_add_u32 {vT1}, {RED_A}, {vRd}")])
        va = vRd if t else vT1
        for wv in range(4):
            for hh_ in range(2):
                L.append([I(f"ds_read_b128 {rp(8 * wv + 4 * hh_, 4)}, {va} offset:{wv * RED_W + 512 * hh_}", lds=(base, base + 4 * RED_W, None))])
        for k in range(4):
            L.append([I(f"v_lshlrev_b32 {ro(2 * k)}, 16, {rres(4 * t + k)}")])
            L.append([I(f"v_and_b32 {ro(2 * k + 1)}, 0xffff0000, {rres(4 * t + k)}")])
        for wv in range(4):
            if pk:
                L += [[I(f"v_pk_add_f32 {ro(2 * k, 2)}, {ro(2 * k, 2)}, {rp(8 * wv + 2 * k, 2)}")] for k in range(4)]
            else:
                L += [[I(f"v_add_f32 {ro(k)}, {ro(k)}, {rp(8 * wv + k)}")] for k in range(8)]
        L += [[I(f"v_cvt_pk_bf16_f32 {op(k)}, {ro(2 * k)}, {ro(2 * k + 1)}")] for k in range(4)]
        if t:
            L.append([I(f"s_add_u32 {sO}, {sO}, {32 * RB}")])
        L.append([I(f"buffer_store_dwordx4 {op}, {vO}, {srd['out']}, {sO} offen")])
        return L
    E(f"s_lshl_b32 {sT0}, {sW}, 3")
    E(f"s_add_u32 {sT0}, {sT0}, {sTB}")
    E(f"s_mul_i32 {sO}, {sT0}, {RB}")
    E(f"s_lshl_b32 {sT0}, {sJ}, 7")
    E(f"s_add_u32 {sO}, {sO}, {sT0}")
    X(flat(weave(weave(m4(2), [gload(3, k) for k in range(14)]), red_write(0), start=3, end=20)))
    X([waitlg()])
    E("s_barrier")
    X(stamp("g4s2"))
    X(flat(weave(m4(3), red_final(0, False))))
    X(stamp("g4s3"))
    X(flat(red_write(1)))
    X([waitlg()])
    E("s_barrier")
    X(flat(red_final(1, True)))
    X(stamp("out"))
    if stamps:
        E("s_waitcnt vmcnt(0)")
        X(stamp("end"))
        E("s_waitcnt lgkmcnt(0)")
        k = nstamp[0] - 1
        E(f"v_writelane_b32 {vST}, {sST(2 * (k & 1))}, {k}")
        E(f"v_writelane_b32 {vST}, {sSpin}, 63")
        E(f"s_lshl_b32 {sT0}, s2, 2")
        E(f"s_add_u32 {sT0}, {sT0}, {sW}")
        E(f"s_lshl_b32 {sT0}, {sT0}, 8")
        E(f"s_add_u32 {sT0}, {sT0}, {WS_STAMP}")
        E(f"v_lshlrev_b32 {vT0}, 2, {vL}")
        E(f"buffer_store_dword {vST}, {vT0}, {srd['ws']}, {sT0} offen")
    E("s_endpgm")

    body = finalize(P)

    Hh = []
    H = lambda t, **kw: Hh.append(I(t, **kw))
    H("L_helper:")
    H("v_lshlrev_b32 v1, 7, v0")
    H(f"s_cmp_eq_u32 {sQ}, 0")
    H("s_cbranch_scc1 L_hclear")
    if o["touch"]:
        H("s_getpc_b64 s[0:1]")
        H("L_pc:")
        H(f"s_sub_u32 s0, s0, L_pc-{KNAME}")
        H("s_subb_u32 s1, s1, 0")
        H(f"v_min_u32 v2, L_end-{KNAME}, v1")
        H("global_load_dword v3, v2, s[0:1]")
    H("s_waitcnt lgkmcnt(0)")
    H("s_branch L_htouch")
    H("L_hclear:")
    for n in ("ws", "dbg"):
        Hh.extend(srd_consts(n))
    for i in range(4):
        H(f"v_mov_b32 v{4 + i}, 0")
    H("v_lshlrev_b32 v2, 4, v0")
    H(f"s_lshl_b32 {sT0}, {sGrp}, 12")
    H(f"s_lshl_b32 {sT1}, {sGrp}, 4")
    H("v_cmp_eq_u32 vcc, 0, v0")
    H(f"v_mov_b32 v8, {OOB}")
    H("v_mov_b32 v9, 1")
    H("v_cndmask_b32 v8, v8, v4, vcc")
    H("s_waitcnt lgkmcnt(0)")
    for n in ("ws", "dbg"):
        Hh.extend(srd_base(n))
    H(f"buffer_store_dwordx4 v[4:7], v2, {srd['ws']}, {sT0} offen sc1")
    H("s_waitcnt vmcnt(0)")
    H("s_barrier")
    H(f"buffer_store_dword v9, v8, {srd['dbg']}, {sT1} offen sc1")
    H("L_htouch:")
    if o["touch"]:
        for n in ("w2", "w3", "w4"):
            Hh.extend(srd_base(n)); Hh.extend(srd_consts(n))
        H(f"s_lshl_b32 {sT0}, {sGrp}, 1")
        H(f"s_add_u32 {sT0}, {sT0}, {sQ}")
        H(f"s_mul_i32 {sT1}, {sT0}, {98 * 128}")
        H(f"s_mul_i32 {sT0}, {sT0}, {392 * 128}")
        H(f"v_min_u32 v2, {97 * 128}, v1")
        H(f"v_add_u32 v10, {256 * 128}, v1")
        H(f"v_min_u32 v10, {391 * 128}, v10")
        H(f"buffer_load_dword v11, v2, {srd['w2']}, {sT1} offen")
        for n, r in (("w3", 12), ("w4", 14)):
            H(f"buffer_load_dword v{r}, v1, {srd[n]}, {sT0} offen")
            H(f"buffer_load_dword v{r + 1}, v10, {srd[n]}, {sT0} offen")
    H("s_waitcnt vmcnt(0)")
    H("L_end:")
    H("s_endpgm")
    helper = finalize(Hh, check_lds=False)

    hdr = open("standalone__mixer_s_mlp__prompt.s.ref").read().split("; Override launch")[0]
    T = [hdr.rstrip(),
         "; Fused token-mix + channel-MLP kernel; generated by a hand-written script (work/gen1.py).",
         "; @launch grid=(256,1,1) block=(256,1,1) lds=163840",
         '.amdgcn_target "amdgcn-amd-amdhsa--gfx950"', ".text", f".globl {KNAME}", ".p2align 8",
         f".type {KNAME},@function", f"{KNAME}:"]
    T += [x.text for x in body]
    T += tail
    T += [x.text for x in helper]
    T += ['.section .rodata,"a"', ".p2align 6", f".amdhsa_kernel {KNAME}",
          "  .amdhsa_next_free_vgpr 512", "  .amdhsa_next_free_sgpr 102", "  .amdhsa_accum_offset 256",
          "  .amdhsa_group_segment_fixed_size 0", "  .amdhsa_kernarg_size 64", "  .amdhsa_user_sgpr_count 2",
          "  .amdhsa_user_sgpr_kernarg_segment_ptr 1", "  .amdhsa_system_sgpr_workgroup_id_x 1", ".end_amdhsa_kernel"]
    return "\n".join(T) + "\n", names


if __name__ == "__main__":
    src, _ = gen()
    open("standalone__mixer_s_mlp__prompt.s", "w").write(src)
    src, names = gen(stamps=True)
    open("k_stamp.s", "w").write(src)
    open("k_stamp.names", "w").write("\n".join(names))
    print("ok", len(src), names)
```
